```python
import torch

def _softmax(x, axis=-1):
    return torch.softmax(x, dim=axis)
def _gelu(x):
    return torch.nn.functional.gelu(x, approximate="tanh")
def _silu(x):
    return torch.nn.functional.silu(x)
def _sigmoid(x):
    return torch.sigmoid(x)
def _layernorm(x, axis=-1, eps=1e-5):
    m = x.mean(dim=axis, keepdim=True)
    v = x.var(dim=axis, keepdim=True, unbiased=False)
    return (x - m) / torch.sqrt(v + eps)
def _scatter_add(tgt, idx, src, axis=0):
    return tgt.clone().index_add_(axis, idx, src)
def _segment_sum(src, seg, n):
    out = torch.zeros((n,) + src.shape[1:], dtype=src.dtype)
    return out.index_add_(0, seg, src)
def _pad(x, pw):
    flat = tuple(v for pair in reversed(pw) for v in pair)
    return torch.nn.functional.pad(x, flat)

kernel_name = 'standalone__normalfloat_lut_codebook_lookup__prompt'

def setup_inputs():

    _w = (lambda a: (lambda t: t.to(torch.bfloat16) if t.is_floating_point() else t)(torch.as_tensor(a)))
    B, S, D, F = 1, 2048, 1024, 3584
    G = 128 if 128 > 0 else D
    D = (D // G) * G
    ng = D // G
    nf4 = torch.tensor([
        -1.0, -0.6961928009986877, -0.5250730514526367, -0.39491748809814453,
        -0.28444138169288635, -0.18477343022823334, -0.09105003625154495, 0.0,
        0.07958029955625534, 0.16093020141124725, 0.24611230194568634, 0.33791524171829224,
        0.44070982933044434, 0.5626170039176941, 0.7229568362236023, 1.0
    ], dtype=float)
    qw = torch.randint(0, 16, (D, F)).to(torch.int64)
    absmax = (torch.abs((lambda *s: torch.randn(*s, dtype=torch.bfloat16) * 0.05)(ng, F)) + 0.01).to(float)
    return {
        "x": _w((lambda *s: torch.randn(*s, dtype=torch.bfloat16) * 0.05)(B, S, D)),
        "qw": _w(qw),
        "codebook": _w(nf4),
        "absmax": _w(absmax),
    }

def reference(x, qw, codebook, absmax):
    B, S, D = x.shape
    ng, F = absmax.shape
    G = D // ng
    w_nf = codebook[qw]
    s = (lambda x, n, axis: torch.repeat_interleave(x, n, dim=axis))(absmax, G, axis=0)
    w = (lambda x, dt: x.to(dt))(w_nf * s, x.dtype)
    return torch.einsum("bsd,df->bsf", x, w)
```

```python
import sys
NAME = "standalone__normalfloat_lut_codebook_lookup__prompt"
M, N, K = 2048, 3584, 1024
STAGE = 45056
BOFF = 16384
BLK = 28672
out = []
def e(s=""): out.append(s)

HEADER = open('cdna_kernels/%s.s.ref' % NAME).read().split('\n')
for l in HEADER[:8]: e(l)
e("; @launch kernel=deq_kernel grid=(256,1,1) block=(256,1,1) lds=0")
e("; @launch kernel=%s_kernel grid=(256,1,1) block=(512,1,1) lds=%d" % (NAME, 3*STAGE))
e('.amdgcn_target "amdgcn-amd-amdhsa--gfx950"')
e(".text")

e(".globl deq_kernel")
e(".p2align 8")
e(".type deq_kernel,@function")
e("deq_kernel:")
e("  s_cmp_ge_u32 s2, 256")
e("  s_cbranch_scc1 L_deq_done")
e("  s_load_dwordx4 s[4:7], s[0:1], 8")
e("  s_load_dwordx2 s[8:9], s[0:1], 24    ; absmax")
e("  s_load_dwordx2 s[10:11], s[0:1], 48  ; ws")
e("  s_and_b32 s12, s2, 7          ; xcd")
e("  s_lshr_b32 s13, s2, 3         ; t")
e("  s_and_b32 s14, s12, 1")
e("  s_lshl_b32 s14, s14, 3")
e("  s_and_b32 s15, s13, 7")
e("  s_add_u32 s14, s14, s15       ; stage s")
e("  s_lshr_b32 s15, s12, 1")
e("  s_lshl_b32 s15, s15, 2")
e("  s_lshr_b32 s16, s13, 3")
e("  s_add_u32 s15, s15, s16       ; nj")
e("  v_lshrrev_b32 v1, 6, v0")
e("  v_and_b32 v2, 63, v0          ; lane")
e("  v_readfirstlane_b32 s17, v1   ; wave")
e("  v_and_b32 v3, 15, v2          ; c")
e("  v_lshrrev_b32 v4, 4, v2       ; h")
e("  s_and_b32 s18, s17, 1         ; kh")
e("  s_lshr_b32 s19, s17, 1        ; wn")
e("  s_mul_i32 s20, s15, 224")
e("  s_mul_i32 s21, s19, 112")
e("  s_add_u32 s20, s20, s21       ; cb")
e("  s_lshl_b32 s21, s14, 6")
e("  s_lshl_b32 s22, s18, 5")
e("  s_add_u32 s21, s21, s22       ; k base")
e("  s_mul_i32 s22, s21, 14336")
e("  s_lshl_b32 s23, s20, 2")
e("  s_add_u32 s22, s22, s23")
e("  v_mul_u32_u24 v5, 114688, v4")
e("  v_lshl_add_u32 v6, v3, 4, v5        ; voff x4")
e("  v_mul_u32_u24 v7, 12, v3")
e("  v_add_u32 v7, v7, v5")
e("  v_add_u32 v7, 256, v7               ; voff x3")
e("  s_lshr_b32 s23, s14, 1")
e("  s_mul_i32 s23, s23, 7168")
e("  s_lshl_b32 s24, s20, 1")
e("  s_add_u32 s23, s23, s24")
e("  v_lshlrev_b32 v8, 3, v3             ; c*8")
e("  v_mul_u32_u24 v9, 6, v3             ; c*6")
e("  v_lshlrev_b32 v10, 1, v3")
e("  s_lshl_b32 s25, s15, 4")
e("  s_add_u32 s25, s25, s14")
e("  s_mul_i32 s25, s25, %d" % BLK)
e("  s_mul_i32 s26, s19, 14336")
e("  s_add_u32 s25, s25, s26")
e("  s_mul_i32 s26, s18, 7168")
e("  s_add_u32 s25, s25, s26")
e("  s_add_u32 s26, s25, 4096")
e("  v_lshlrev_b32 v11, 4, v2            ; lane*16")
e("  s_waitcnt lgkmcnt(0)")
def srd(d, lo, hi, nbytes):
    e("  s_mov_b32 s%d, s%d" % (d, lo))
    e("  s_mov_b32 s%d, s%d" % (d+1, hi))
    e("  s_mov_b32 s%d, %d" % (d+2, nbytes))
    e("  s_mov_b32 s%d, 0x20000" % (d+3))
srd(28, 4, 5, K*N*4)
srd(32, 6, 7, 32)
srd(36, 8, 9, 8*N*2)
srd(40, 10, 11, 256*BLK)
e("  buffer_load_ushort v12, v10, s[32:35], 0 offen")
e("  buffer_load_dwordx2 v[14:15], v8, s[36:39], s23 offen")
e("  buffer_load_ushort v16, v9, s[36:39], s23 offen offset:128")
e("  buffer_load_ushort v17, v9, s[36:39], s23 offen offset:130")
e("  buffer_load_ushort v18, v9, s[36:39], s23 offen offset:132")
for j in range(8):
    e("  buffer_load_dwordx4 v[%d:%d], v6, s[28:31], s22 offen" % (32+4*j, 35+4*j))
    e("  buffer_load_dwordx3 v[%d:%d], v7, s[28:31], s22 offen" % (64+4*j, 66+4*j))
    if j < 7: e("  s_add_u32 s22, s22, 14336")
e("  s_waitcnt vmcnt(16)")
e("  v_lshlrev_b32 v12, 16, v12          ; cb f32")
e("  v_lshlrev_b32 v20, 16, v14")
e("  v_and_b32 v21, 0xffff0000, v14")
e("  v_lshlrev_b32 v22, 16, v15")
e("  v_and_b32 v23, 0xffff0000, v15")
e("  v_lshlrev_b32 v24, 16, v16")
e("  v_lshlrev_b32 v25, 16, v17")
e("  v_lshlrev_b32 v26, 16, v18")
def qreg(j, t):
    return 32+4*j+t if t < 4 else 64+4*j+(t-4)
for j in range(8):
    e("  s_waitcnt vmcnt(%d)" % (14-2*j))
    for t in range(7):
        e("  v_lshlrev_b32 v%d, 2, v%d" % (qreg(j,t), qreg(j,t)))
    for t in range(7):
        e("  ds_bpermute_b32 v%d, v%d, v12" % (qreg(j,t), qreg(j,t)))
    if j >= 1:
        e("  s_waitcnt lgkmcnt(7)")
        for t in range(7):
            e("  v_mul_f32 v%d, v%d, v%d" % (qreg(j-1,t), qreg(j-1,t), 20+t))
e("  s_waitcnt lgkmcnt(0)")
for t in range(7):
    e("  v_mul_f32 v%d, v%d, v%d" % (qreg(7,t), qreg(7,t), 20+t))
for t in range(7):
    b = 96 + 4*t
    for d in range(4):
        e("  v_cvt_pk_bf16_f32 v%d, v%d, v%d" % (b+d, qreg(2*d,t), qreg(2*d+1,t)))
    if t < 4:
        e("  buffer_store_dwordx4 v[%d:%d], v11, s[40:43], s25 offen offset:%d" % (b, b+3, t*1024))
    else:
        e("  buffer_store_dwordx4 v[%d:%d], v11, s[40:43], s26 offen offset:%d" % (b, b+3, (t-4)*1024))
e("L_deq_done:")
e("  s_endpgm")

KN = NAME + "_kernel"
e(".globl %s" % KN)
e(".p2align 8")
e(".type %s,@function" % KN)
e("%s:" % KN)
e("  s_cmp_ge_u32 s2, 256")
e("  s_cbranch_scc1 L_done")
e("  s_load_dwordx2 s[4:5], s[0:1], 0     ; x")
e("  s_load_dwordx2 s[6:7], s[0:1], 32    ; out")
e("  s_load_dwordx2 s[10:11], s[0:1], 48  ; ws")
e("  s_and_b32 s12, s2, 7          ; xcd")
e("  s_lshr_b32 s13, s2, 3         ; t")
e("  s_and_b32 s14, s12, 1")
e("  s_lshl_b32 s14, s14, 3")
e("  s_and_b32 s15, s13, 7")
e("  s_add_u32 s14, s14, s15       ; mi")
e("  s_lshr_b32 s15, s12, 1")
e("  s_lshl_b32 s15, s15, 2")
e("  s_lshr_b32 s16, s13, 3")
e("  s_add_u32 s15, s15, s16       ; nj")
e("  v_lshrrev_b32 v1, 6, v0")
e("  v_and_b32 v2, 63, v0          ; lane")
e("  v_readfirstlane_b32 s17, v1   ; wave")
e("  s_nop 3")
e("  s_cmp_ge_u32 s17, 4")
e("  s_cbranch_scc0 L_compute")
e("  s_sub_u32 s17, s17, 4         ; lw")
e("  v_lshrrev_b32 v3, 3, v2       ; r = lane>>3")
e("  v_and_b32 v4, 7, v2")
e("  v_xor_b32 v4, v4, v3          ; chunk")
e("  v_lshlrev_b32 v4, 4, v4")
e("  v_lshl_add_u32 v4, v3, 11, v4 ; r*2048 + chunk*16")
e("  s_lshl_b32 s18, s14, 18       ; mi*128*2048")
e("  s_lshl_b32 s19, s17, 16       ; lw*32*2048")
e("  s_add_u32 s18, s18, s19")
e("  v_add_u32 v4, s18, v4         ; vA0")
e("  v_add_u32 v5, 15360, v4")
e("  v_add_u32 v6, 30720, v4")
e("  v_add_u32 v7, 46080, v4")
e("  s_mul_i32 s19, s17, 7168")
e("  v_lshlrev_b32 v8, 4, v2")
e("  v_add_u32 v8, s19, v8         ; vB")
e("  s_lshl_b32 s20, s17, 12")
e("  s_add_u32 s21, s19, %d        ; m0 B base" % BOFF)
e("  s_mov_b32 s22, 0              ; soffset A")
e("  s_mul_i32 s23, s15, %d        ; soffset B" % (16*BLK))
e("  s_mov_b32 s24, 0")
e("  s_waitcnt lgkmcnt(0)")
srd(28, 4, 5, M*K*2)
srd(40, 10, 11, 256*BLK)
def issue_stage():
    e("  s_add_u32 m0, s24, s20")
    e("  s_add_u32 s25, s23, 4096")
    for u in range(4):
        e("  buffer_load_dwordx4 v%d, s[28:31], s22 offen offset:%d lds" % (4+u, u*1024))
    e("  s_add_u32 m0, s24, s21")
    e("  s_add_u32 s22, s22, 128")
    for u in range(4):
        e("  buffer_load_dwordx4 v8, s[40:43], s23 offen offset:%d lds" % (u*1024))
    e("  s_add_u32 m0, m0, 4096")
    e("  s_add_u32 s23, s23, %d" % BLK)
    for u in range(3):
        e("  buffer_load_dwordx4 v8, s[40:43], s25 offen offset:%d lds" % (u*1024))
    e("  s_add_u32 s24, s24, %d" % STAGE)
    e("  s_cmp_eq_u32 s24, %d" % (3*STAGE))
    e("  s_cselect_b32 s24, 0, s24")
e("  s_mov_b32 s26, 0")
e("L_ld_pro:")
issue_stage()
e("  s_add_u32 s26, s26, 1")
e("  s_cmp_lt_u32 s26, 3")
e("  s_cbranch_scc1 L_ld_pro")
e("  s_waitcnt vmcnt(22)")
e("  s_barrier")
e("  s_mov_b32 s26, 0")
e("L_ld_loop:")
e("  s_waitcnt vmcnt(11)")
e("  s_barrier")
issue_stage()
e("  s_add_u32 s26, s26, 1")
e("  s_cmp_lt_u32 s26, 13")
e("  s_cbranch_scc1 L_ld_loop")
e("  s_waitcnt vmcnt(11)")
e("  s_barrier")
e("  s_waitcnt vmcnt(0)")
e("  s_barrier")
e("  s_endpgm")
ACC = 0
VB = 16
FR = VB + 112
def acc(mt, t): return VB + (mt*7+t)*4
def xf(p, mt): return FR + 44*p + 4*mt
def wf(p, t): return FR + 44*p + 16 + 4*t
e("L_compute:")
e("  s_and_b32 s18, s17, 1         ; wm")
e("  s_lshr_b32 s19, s17, 1        ; wn")
e("  v_and_b32 v3, 15, v2          ; l&15")
e("  v_lshrrev_b32 v4, 4, v2       ; h")
e("  v_and_b32 v5, 7, v2")
e("  v_xor_b32 v5, v5, v4")
e("  v_xor_b32 v6, 4, v5")
e("  s_lshl_b32 s20, s18, 13       ; wm*64*128")
e("  v_lshlrev_b32 v7, 7, v3")
e("  v_add_u32 v7, s20, v7")
e("  v_lshl_add_u32 v8, v5, 4, v7")
e("  v_lshl_add_u32 v9, v6, 4, v7")
e("  s_mul_i32 s20, s19, 14336")
e("  s_add_u32 s20, s20, %d" % BOFF)
e("  v_lshlrev_b32 v10, 4, v2")
e("  v_add_u32 v10, s20, v10")
e("  v_mov_b32 v11, v8")
e("  v_mov_b32 v12, v9")
e("  v_mov_b32 v13, v10            ; cur w")
e("  s_lshl_b32 s20, s14, 7")
e("  s_lshl_b32 s21, s18, 6")
e("  s_add_u32 s20, s20, s21")
e("  v_add_u32 v14, s20, v3")
e("  v_mul_u32_u24 v14, 7168, v14")
e("  s_mul_i32 s20, s15, 448")
e("  s_mul_i32 s21, s19, 224")
e("  s_add_u32 s20, s20, s21")
e("  v_add_u32 v14, s20, v14")
e("  v_mul_u32_u24 v15, 24, v4")
e("  v_add_u32 v15, v15, v14")
e("  v_add_u32 v15, 128, v15")
e("  v_lshl_add_u32 v14, v4, 5, v14")
for i in range(112):
    e("  v_mov_b32 v%d, 0" % (VB+i))
e("  s_waitcnt lgkmcnt(0)")
srd(32, 6, 7, M*N*2)
e("  s_mov_b32 s24, 0")
e("  s_mov_b32 s26, 0")
e("  s_barrier")
def reads(p, kh):
    r = []
    xa = 11 if kh == 0 else 12
    for mt in range(4):
        r.append("  ds_read_b128 v[%d:%d], v%d offset:%d" % (xf(p,mt), xf(p,mt)+3, xa, mt*2048))
    for t in range(7):
        r.append("  ds_read_b128 v[%d:%d], v13 offset:%d" % (wf(p,t), wf(p,t)+3, kh*7168 + t*1024))
    return r
def mfmas(p):
    r = []
    for t in range(7):
        for mt in range(4):
            a = acc(mt,t)
            r.append("  v_mfma_f32_16x16x32_bf16 v[%d:%d], v[%d:%d], v[%d:%d], v[%d:%d]" % (a,a+3, wf(p,t),wf(p,t)+3, xf(p,mt),xf(p,mt)+3, a,a+3))
    return r
for l in reads(0,0): e(l)
e(".p2align 6")
e("L_loop:")
e("  s_waitcnt lgkmcnt(0)")
mm = mfmas(0); rr = reads(1,1)
for i, m in enumerate(mm):
    e(m)
    if i % 2 == 0 and i//2 < len(rr): e(rr[i//2])
    if i == 22:
        e("  s_add_u32 s24, s24, %d" % STAGE)
        e("  s_cmp_eq_u32 s24, %d" % (3*STAGE))
        e("  s_cselect_b32 s24, 0, s24")
    if i == 23: e("  v_add_u32 v11, s24, v8")
    if i == 24: e("  v_add_u32 v12, s24, v9")
    if i == 25: e("  v_add_u32 v13, s24, v10")
e("  s_waitcnt lgkmcnt(0)")
e("  s_barrier")
mm = mfmas(1); rr = reads(0,0)
for i, m in enumerate(mm):
    e(m)
    if i % 2 == 0 and i//2 < len(rr): e(rr[i//2])
    if i == 25:
        e("  s_add_u32 s26, s26, 1")
        e("  s_cmp_lt_u32 s26, 16")
e("  s_cbranch_scc1 L_loop")
e("  s_waitcnt lgkmcnt(0)")
e("  s_nop 7")
T = FR
for mt in range(4):
    b = T + (mt&1)*16
    for d in range(8):
        r = d >> 1; t0 = 2*(d&1)
        e("  v_cvt_pk_bf16_f32 v%d, v%d, v%d" % (b+d, acc(mt,t0)+r, acc(mt,t0+1)+r))
    for d in range(6):
        e0 = 2*d; e1 = 2*d+1
        e("  v_cvt_pk_bf16_f32 v%d, v%d, v%d" % (b+8+d, acc(mt,4+e0%3)+e0//3, acc(mt,4+e1%3)+e1//3))
    e("  s_mov_b32 s20, %d" % (mt*16*7168))
    e("  buffer_store_dwordx4 v[%d:%d], v14, s[32:35], s20 offen" % (b, b+3))
    e("  buffer_store_dwordx4 v[%d:%d], v14, s[32:35], s20 offen offset:16" % (b+4, b+7))
    e("  buffer_store_dwordx4 v[%d:%d], v15, s[32:35], s20 offen" % (b+8, b+11))
    e("  buffer_store_dwordx2 v[%d:%d], v15, s[32:35], s20 offen offset:16" % (b+12, b+13))
e("L_done:")
e("  s_endpgm")

e('.section .rodata,"a"')
def kd(name, vg, sg):
    e(".p2align 6")
    e(".amdhsa_kernel %s" % name)
    e("  .amdhsa_next_free_vgpr %d" % vg)
    e("  .amdhsa_next_free_sgpr %d" % sg)
    e("  .amdhsa_accum_offset %d" % ((vg+3)//4*4))
    e("  .amdhsa_group_segment_fixed_size 0")
    e("  .amdhsa_kernarg_size 56")
    e("  .amdhsa_user_sgpr_count 2")
    e("  .amdhsa_user_sgpr_kernarg_segment_ptr 1")
    e("  .amdhsa_system_sgpr_workgroup_id_x 1")
    e("  .amdhsa_float_denorm_mode_32 3")
    e(".end_amdhsa_kernel")
kd("deq_kernel", 124, 48)
kd(KN, FR+88, 48)
open(sys.argv[1], 'w').write('\n'.join(out) + '\n')
```
